```python
import torch

def _softmax(x, axis=-1):
    return torch.softmax(x, dim=axis)
def _gelu(x):
    return torch.nn.functional.gelu(x, approximate="tanh")
def _silu(x):
    return torch.nn.functional.silu(x)
def _sigmoid(x):
    return torch.sigmoid(x)
def _layernorm(x, axis=-1, eps=1e-5):
    m = x.mean(dim=axis, keepdim=True)
    v = x.var(dim=axis, keepdim=True, unbiased=False)
    return (x - m) / torch.sqrt(v + eps)
def _scatter_add(tgt, idx, src, axis=0):
    return tgt.clone().index_add_(axis, idx, src)
def _segment_sum(src, seg, n):
    out = torch.zeros((n,) + src.shape[1:], dtype=src.dtype)
    return out.index_add_(0, seg, src)
def _pad(x, pw):
    flat = tuple(v for pair in reversed(pw) for v in pair)
    return torch.nn.functional.pad(x, flat)

kernel_name = 'concat_heads__gqa_block_cached__gqa_block_cached__near_ridge'

def setup_inputs():

    _w = (lambda a: (lambda t: t.to(torch.bfloat16) if t.is_floating_point() else t)(torch.as_tensor(a)))
    def _A_setup():
        B, Sq, D = 16, 128, 448
        Hq, Hkv, Sk, Dh = 16, 8, 1024, 256
        assert Hq % Hkv == 0, (Hq, Hkv)
        return {
            "x": _w((lambda *s: torch.randn(*s, dtype=torch.bfloat16) * 0.8)(B, Sq, D)),
            "k_cache": _w((lambda *s: torch.randn(*s, dtype=torch.bfloat16) * 0.8)(B, Hkv, Sk, Dh)),
            "v_cache": _w((lambda *s: torch.randn(*s, dtype=torch.bfloat16) * 0.05)(B, Hkv, Sk, Dh)),
            "wq": _w((lambda *s: torch.randn(*s, dtype=torch.bfloat16) * 0.8)(D, Hq * Dh) * (D ** -0.5)),
            "wo": _w((lambda *s: torch.randn(*s, dtype=torch.bfloat16) * 0.05)(Hq * Dh, D) * ((Hq * Dh) ** -0.5)),
        }
    _A_in = _A_setup()

    def _B_setup():
        B, Sq, D = 16, 128, 448
        Hq, Hkv, Sk, Dh = 16, 8, 1024, 256
        assert Hq % Hkv == 0, (Hq, Hkv)
        return {
            "x": _w((lambda *s: torch.randn(*s, dtype=torch.bfloat16) * 0.8)(B, Sq, D)),
            "k_cache": _w((lambda *s: torch.randn(*s, dtype=torch.bfloat16) * 0.8)(B, Hkv, Sk, Dh)),
            "v_cache": _w((lambda *s: torch.randn(*s, dtype=torch.bfloat16) * 0.05)(B, Hkv, Sk, Dh)),
            "wq": _w((lambda *s: torch.randn(*s, dtype=torch.bfloat16) * 0.8)(D, Hq * Dh) * (D ** -0.5)),
            "wo": _w((lambda *s: torch.randn(*s, dtype=torch.bfloat16) * 0.05)(Hq * Dh, D) * ((Hq * Dh) ** -0.5)),
        }
    _B_in = _B_setup()

    return {
        "A_x": _A_in["x"],
        "A_k_cache": _A_in["k_cache"],
        "A_v_cache": _A_in["v_cache"],
        "A_wq": _A_in["wq"],
        "A_wo": _A_in["wo"],
        "B_x": _B_in["x"],
        "B_k_cache": _B_in["k_cache"],
        "B_v_cache": _B_in["v_cache"],
        "B_wq": _B_in["wq"],
        "B_wo": _B_in["wo"],
    }

def reference(A_x, A_k_cache, A_v_cache, A_wq, A_wo, B_x, B_k_cache, B_v_cache, B_wq, B_wo):
    def _A_ref(x, k_cache, v_cache, wq, wo):
        B, Sq, D = x.shape
        Hq, Dh = 16, 256
        Hkv = k_cache.shape[1]
        rep = Hq // Hkv
        q = (lambda x, *d: x.permute(*d))((x @ wq).reshape(B, Sq, Hq, Dh), 0, 2, 1, 3)
        k = (lambda x, n, axis: torch.repeat_interleave(x, n, dim=axis))(k_cache, rep, axis=1)
        v = (lambda x, n, axis: torch.repeat_interleave(x, n, dim=axis))(v_cache, rep, axis=1)
        scores = torch.einsum("bhqd,bhkd->bhqk", q, k) * (Dh ** -0.5)
        p = _softmax(scores, axis=-1)
        o = torch.einsum("bhqk,bhkd->bhqd", p, v)
        return (lambda x, *d: x.permute(*d))(o, 0, 2, 1, 3).reshape(B, Sq, Hq * Dh) @ wo

    def _B_ref(x, k_cache, v_cache, wq, wo):
        B, Sq, D = x.shape
        Hq, Dh = 16, 256
        Hkv = k_cache.shape[1]
        rep = Hq // Hkv
        q = (lambda x, *d: x.permute(*d))((x @ wq).reshape(B, Sq, Hq, Dh), 0, 2, 1, 3)
        k = (lambda x, n, axis: torch.repeat_interleave(x, n, dim=axis))(k_cache, rep, axis=1)
        v = (lambda x, n, axis: torch.repeat_interleave(x, n, dim=axis))(v_cache, rep, axis=1)
        scores = torch.einsum("bhqd,bhkd->bhqk", q, k) * (Dh ** -0.5)
        p = _softmax(scores, axis=-1)
        o = torch.einsum("bhqk,bhkd->bhqd", p, v)
        return (lambda x, *d: x.permute(*d))(o, 0, 2, 1, 3).reshape(B, Sq, Hq * Dh) @ wo

    a = _A_ref(A_x, A_k_cache, A_v_cache, A_wq, A_wo)
    b = _B_ref(B_x, B_k_cache, B_v_cache, B_wq, B_wo)
    return torch.concatenate([a, b], axis=-1)
```

```python
import re

REG_RE = re.compile(r'\b([vas])\[(\d+):(\d+)\]|\b([vas])(\d+)\b|\b(vcc|exec|m0|scc)\b')

def regs_of(op):
    out = set()
    for m in REG_RE.finditer(op):
        if m.group(1):
            for i in range(int(m.group(2)), int(m.group(3)) + 1):
                out.add(m.group(1) + str(i))
        elif m.group(4):
            out.add(m.group(4) + m.group(5))
        else:
            out.add(m.group(6))
    return out

TRANS = ('v_exp_f32', 'v_log_f32', 'v_rcp_f32', 'v_rsq_f32', 'v_sqrt_f32')

class Ins:
    __slots__ = ('text', 'op', 'kind', 'dst', 'src', 'srcA', 'srcB', 'srcC', 'tag', 'cost', 'passes')
    def __init__(self, text, tag=None):
        self.text = text
        self.tag = tag
        t = text.split(';')[0].strip()
        self.srcA = self.srcB = self.srcC = set()
        self.passes = 0
        if t.endswith(':') or t.startswith('.') or not t:
            self.op = 'label'; self.kind = 'label'; self.dst = set(); self.src = set(); self.cost = 0
            return
        sp = t.split(None, 1)
        op = sp[0]; self.op = op
        ops = [x.strip() for x in sp[1].split(',')] if len(sp) > 1 else []
        self.cost = 1
        if op.startswith('v_mfma'):
            self.kind = 'mfma'
            self.dst = regs_of(ops[0]); self.srcA = regs_of(ops[1]); self.srcB = regs_of(ops[2]); self.srcC = regs_of(ops[3])
            self.src = self.srcA | self.srcB | self.srcC
            self.passes = 8 if '32x32' in op else 4
        elif op.startswith('ds_read') or op.startswith('ds_bpermute') or op.startswith('ds_swizzle'):
            self.kind = 'ds'
            self.dst = regs_of(ops[0]); self.src = set().union(*[regs_of(x.split(' offset')[0]) for x in ops[1:]])
        elif op.startswith('ds_write'):
            self.kind = 'ds'
            self.dst = set(); self.src = set().union(*[regs_of(x.split(' offset')[0]) for x in ops])
        elif op.startswith('buffer_load') or op.startswith('global_load'):
            self.kind = 'vmem'
            if t.endswith(' lds') or 'lds' in op:
                self.dst = set(); self.src = set().union(*[regs_of(x) for x in ops]) | {'m0'}
                self.kind = 'dma'
            else:
                self.dst = regs_of(ops[0]); self.src = set().union(*[regs_of(x) for x in ops[1:]])
        elif op.startswith('buffer_store') or op.startswith('global_store') or op.startswith('buffer_atomic') or op.startswith('global_atomic'):
            self.kind = 'vstore'
            self.dst = set(); self.src = set().union(*[regs_of(x) for x in ops])
        elif op.startswith('buffer_') :
            self.kind = 'vmisc'; self.dst = set(); self.src = set()
        elif op.startswith('v_'):
            self.kind = 'valu'
            if op.startswith('v_cmp'):
                self.dst = regs_of(ops[0]); self.src = set().union(*[regs_of(x) for x in ops[1:]])
            elif op.startswith('v_permlane') and 'swap' in op:
                self.dst = regs_of(ops[0]) | regs_of(ops[1]); self.src = set(self.dst)
            elif op.startswith('v_add_co') or op.startswith('v_addc_co'):
                self.dst = regs_of(ops[0]) | regs_of(ops[1]); self.src = set().union(*[regs_of(x) for x in ops[2:]])
            else:
                self.dst = regs_of(ops[0]); self.src = set().union(*[regs_of(x) for x in ops[1:]]) if len(ops) > 1 else set()
                if op.startswith('v_fmac') or op.startswith('v_dot2c'): self.src |= self.dst
            if op in TRANS: self.cost = 2
        elif op.startswith('s_'):
            self.kind = 'salu'
            if op in ('s_waitcnt', 's_barrier', 's_nop', 's_endpgm', 's_branch', 's_setprio', 's_sleep') or op.startswith('s_cbranch'):
                self.dst = set(); self.src = set()
                self.kind = op if op in ('s_waitcnt', 's_barrier', 's_nop') else 'salu'
            elif op.startswith('s_cmp'):
                self.dst = {'scc'}; self.src = set().union(*[regs_of(x) for x in ops])
            elif op.startswith('s_load') or op.startswith('s_mem'):
                self.kind = 'smem'
                self.dst = regs_of(ops[0]); self.src = set().union(*[regs_of(x) for x in ops[1:]]) if len(ops) > 1 else set()
            else:
                self.dst = regs_of(ops[0]) if ops else set(); self.src = set().union(*[regs_of(x) for x in ops[1:]]) if len(ops) > 1 else set()
        else:
            raise ValueError("unknown instr " + t)
    def states(self):
        if self.kind == 'label': return 0
        if self.op == 's_nop': return int(self.text.split()[1], 0) + 1
        return 1

def check_hazards(seq, name=''):
    probs = []
    n = len(seq)
    pos = [0] * (n + 1)
    for i, x in enumerate(seq): pos[i + 1] = pos[i] + x.states()
    last = {}
    def dist(i, j): return pos[j] - pos[i + 1]
    def need(cls, regs, j, ws, why):
        for r in regs:
            i = last.get((cls, r))
            if i is not None:
                w = ws(seq[i]) if callable(ws) else ws
                if dist(i, j) < w:
                    probs.append(f"{name} hazard {why}: [{i}] {seq[i].text.strip()} -> [{j}] {seq[j].text.strip()} dist {dist(i,j)} < {w}")
    for j, x in enumerate(seq):
        if x.kind == 'label': continue
        vs = {r for r in x.src if r[0] in 'va' and r != 'vcc'}
        vd = {r for r in x.dst if r[0] in 'va' and r != 'vcc'}
        if x.kind == 'mfma':
            need('valuw', vs, j, 2, 'valu->mfma')
            need('mfmaw', x.srcA | x.srcB, j, lambda p: {4: 8, 8: 12}[p.passes], 'mfma->mfma AB')
            for r in x.srcC:
                i = last.get(('mfmaw', r))
                if i is not None and seq[i].dst != x.srcC:
                    w = {4: 6, 8: 10}[seq[i].passes]
                    if dist(i, j) < w: probs.append(f"{name} hazard mfma->mfma C overlap [{i}]->[{j}] {x.text}")
            for r in x.dst - x.srcC:
                i = last.get(('mfmaw', r))
                if i is not None:
                    w = {4: 6, 8: 10}[seq[i].passes]
                    if dist(i, j) < w: probs.append(f"{name} hazard mfma->mfma WAW [{i}]->[{j}] {x.text}")
        elif x.kind == 'valu':
            need('mfmaw', vs | vd, j, lambda p: {4: 8, 8: 12}[p.passes], 'mfma->valu')
            need('mfmaCr', vd, j, lambda p: {4: 3, 8: 7}[p.passes], 'mfmaC WAR valu')
            if x.op not in TRANS: need('transw', vs, j, 1, 'trans->valu')
            if x.op.startswith('v_permlane'): need('valuw', vs, j, 2, 'valu->permlane')
            if x.op.startswith('v_readfirstlane') or x.op.startswith('v_readlane'): need('valuw', vs, j, 1, 'valu->readlane')
            ss = {r for r in x.src if r[0] == 's' or r == 'vcc'}
            need('valusw', ss, j, 2, 'valu sgpr->valu')
            need('storer', vd, j, 2, 'store data WAR')
        elif x.kind in ('ds', 'vmem', 'vstore', 'dma'):
            need('mfmaw', vs | vd, j, lambda p: {4: 8, 8: 12}[p.passes], 'mfma->mem')
            ss = {r for r in x.src if r[0] == 's' and r != 'scc'}
            need('valusw', ss, j, 5, 'valu sgpr->vmem')
            if x.kind == 'dma': need('saluw', {'m0'}, j, 1, 'm0->dma')
            need('storer', vd, j, 1, 'store data WAR')
        if x.kind == 'mfma':
            for r in x.dst: last[('mfmaw', r)] = j; last.pop(('valuw', r), None)
            for r in x.srcC: last[('mfmaCr', r)] = j
        elif x.kind == 'valu':
            for r in x.dst:
                if r[0] in 'va' and r != 'vcc':
                    last[('valuw', r)] = j
                    last.pop(('mfmaw', r), None)
                    if x.op in TRANS: last[('transw', r)] = j
                    else: last.pop(('transw', r), None)
                else:
                    last[('valusw', r)] = j
        elif x.kind == 'salu':
            for r in x.dst:
                last[('saluw', r)] = j
                last.pop(('valusw', r), None)
        elif x.kind == 'vstore':
            if 'x4' in x.op or 'x3' in x.op:
                first = x.text.split(None, 1)[1].split(',')[0]
                for r in regs_of(first): last[('storer', r)] = j
    return probs

def resolve_waits(seq):
    probs = []
    lq = []
    vq = []
    out = []
    for x in seq:
        if isinstance(x, Wait):
            cl = cv = None
            if x.ltags is not None:
                idx = [i for i, (t, _) in enumerate(lq) if t in x.ltags]
                if x.ltags == 'all': idx = list(range(len(lq)))
                if idx:
                    k = max(idx); cl = len(lq) - 1 - k; lq = lq[k + 1:]
                else: cl = x.deflt
            if x.vtags is not None:
                idx = [i for i, (t, _) in enumerate(vq) if t in x.vtags]
                if x.vtags == 'all': idx = list(range(len(vq)))
                if idx:
                    k = max(idx); cv = len(vq) - 1 - k; vq = vq[k + 1:]
                else: cv = x.deflt
            parts = []
            if cv is not None: parts.append(f"vmcnt({min(cv,63)})")
            if cl is not None: parts.append(f"lgkmcnt({min(cl,15)})")
            if cl is not None and cl > 15: probs.append(f"lgkmcnt {cl} > 15")
            if parts: out.append(Ins("s_waitcnt " + " ".join(parts), tag=x.tag))
            continue
        if x.kind == 's_waitcnt':
            m = re.search(r'vmcnt\((\d+)\)', x.text)
            if m:
                c = int(m.group(1)); vq = vq[max(0, len(vq) - c):] if c < len(vq) else vq
            m = re.search(r'lgkmcnt\((\d+)\)', x.text)
            if m:
                c = int(m.group(1)); lq = lq[max(0, len(lq) - c):] if c < len(lq) else lq
            out.append(x); continue
        if x.kind != 'label':
            touched = x.src | x.dst
            for t, d in lq + vq:
                if d & touched:
                    probs.append(f"unwaited load reg use: {x.text.strip()} (pending tag {t})")
        if x.kind == 'ds':
            lq.append((x.tag, x.dst))
            if len(lq) > 15: probs.append(f"lds outstanding {len(lq)} at {x.text}")
        elif x.kind == 'smem':
            lq.append((x.tag, x.dst))
        elif x.kind in ('vmem', 'dma', 'vstore'):
            vq.append((x.tag, x.dst))
        out.append(x)
    return out, probs

class Wait:
    kind = 'wait'; cost = 1
    def __init__(self, ltags=None, vtags=None, tag=None, deflt=None):
        self.ltags = ltags; self.vtags = vtags; self.tag = tag; self.deflt = deflt
        self.text = 'WAIT'
```

```python
import sys
from asmlib import *
opts = dict(x.split('=') for x in sys.argv[2:])
OUT = sys.argv[1]
DBG = opts.get('dbg', '')
TIMING = int(opts.get('timing', 0))
NAME = "concat_heads__gqa_block_cached__gqa_block_cached__near_ridge"

PS = 1056; SLOT = 16 * PS; NSLOT = 8
def slot_addr(idx):
    s = idx % NSLOT
    return (s & 1) * 4 * SLOT + (s >> 1) * SLOT
def slot_rel(idx):
    return ((idx % NSLOT) >> 1) * SLOT
LDS_BYTES = NSLOT * SLOT

vK, vV, vGK, vGV = 1, 2, 3, 4
vL = [5, 6, 7, 8]
vT = 9
vF = [10, 11, 12, 13]
vW0, vW1 = 14, 15
NEGM = 16
FR = 32
SB = [64, 96]
QF = 128
def fr(f): return FR + (f % 8) * 4
def vr(a, n): return f"v[{a}:{a+n-1}]"
def ar(a, n): return f"a[{a}:{a+n-1}]"
def XF(rh, ks): return QF + (ks * 2 + rh) * 4
def QFr(ct, s): return QF + ct * 32 + s * 4
def ACC(ct, t): return ct * 64 + t * 4
sW = 3
SX, SWQ, SK, SV, SWO, SWS = 4, 8, 12, 16, 20, 24
sKVH, sB, sPROB = 28, 29, 30
sWL = 31
sC = 58; sT = 59
sOA, sOB = 60, 61
sQO = 62
sTMP = 63
sWOO = 64
sLOOP = 65
sRET = 66
sTM = 68
MF = "v_mfma_f32_16x16x32_bf16"

pro = []
def P(t, tag=None): pro.append(Ins(t, tag))

P("s_cmp_ge_u32 s2, 256")
P("s_cbranch_scc1 L_end")
P("s_load_dwordx16 s[32:47], s[0:1], 0")
P("s_load_dwordx8 s[48:55], s[0:1], 64")
P("s_load_dwordx2 s[56:57], s[0:1], 96")
if TIMING:
    P(f"s_memrealtime s[{sTM}:{sTM+1}]")
P("v_lshrrev_b32 v1, 6, v0")
P("v_and_b32 v0, 63, v0")
P(f"v_readfirstlane_b32 s{sW}, v1")
P(f"s_and_b32 s{sKVH}, s2, 7")
P(f"s_bfe_u32 s{sB}, s2, 0x40003")
P(f"s_lshr_b32 s{sPROB}, s2, 7")
P(f"s_mul_i32 s{sWL}, s{sW}, {4*PS}")
P(f"s_lshl_b32 s{sQO}, s{sKVH}, 10")
P(f"s_mul_i32 s{sWOO}, s{sKVH}, {512*896}")
P(f"s_mov_b32 s{sC}, 0x3db8aa3b")
P(f"s_mov_b32 s{sT}, 0x41a00000")
vWQ = SB[1]
P("v_lshlrev_b32 v2, 4, v0")
P(f"s_lshl_b32 s{sTMP}, s{sW}, 16")
P(f"v_add_u32 v{vWQ}, s{sTMP}, v2")
for i in range(1, 4): P(f"v_add_u32 v{vWQ+i}, {i*8192}, v{vWQ}")
vXO = SB[1] + 4
P("v_and_b32 v3, 15, v0")
P(f"s_lshl_b32 s{sTMP}, s{sW}, 5")
P(f"v_add_u32 v3, s{sTMP}, v3")
P("v_mul_u32_u24 v3, 896, v3")
P("v_lshrrev_b32 v4, 4, v0")
P(f"v_lshl_add_u32 v{vXO}, v4, 4, v3")
P(f"v_add_u32 v{vXO+1}, {16*896}, v{vXO}")
P("s_waitcnt lgkmcnt(0)")
P(f"s_cmp_eq_u32 s{sPROB}, 0")
P(f"s_cselect_b64 s[{SX}:{SX+1}], s[32:33], s[42:43]")
P(f"s_cselect_b64 s[{SK}:{SK+1}], s[34:35], s[44:45]")
P(f"s_cselect_b64 s[{SV}:{SV+1}], s[36:37], s[46:47]")
P(f"s_cselect_b64 s[{SWQ}:{SWQ+1}], s[38:39], s[48:49]")
P(f"s_cselect_b64 s[{SWO}:{SWO+1}], s[40:41], s[50:51]")
P(f"s_mov_b32 s{SWQ+2}, {448*8192}"); P(f"s_mov_b32 s{SWQ+3}, 0x20000")
P(f"s_mul_i32 s{sTMP}, s{sB}, 114688")
P(f"s_add_u32 s{SX}, s{SX}, s{sTMP}"); P(f"s_addc_u32 s{SX+1}, s{SX+1}, 0")
P(f"s_mov_b32 s{SX+2}, 114688"); P(f"s_mov_b32 s{SX+3}, 0x20000")

def dma_piece(idx, i):
    sa = slot_addr(idx)
    tag = ('it', idx)
    if idx < 28:
        ks, rd = idx >> 1, idx & 1
        r = []
        if i == 0: r.append(Ins(f"s_add_u32 s{sTMP}, s{sQO}, {(32*ks+4*rd)*8192}"))
        r.append(Ins(f"s_add_u32 m0, s{sWL}, {sa + i*PS}"))
        r.append(Ins(f"buffer_load_dwordx4 v{vWQ+i}, s[{SWQ}:{SWQ+3}], s{sTMP} offen lds", tag))
        return r
    kind, p = item_kind(idx)
    if kind in 'KV':
        srd, vg = (SK, vGK) if kind == 'K' else (SV, vGV)
        so = sOA if p % 2 == 0 else sOB
        r = []
        if kind == 'K' and i == 0:
            if p == 0: r.append(Ins(f"s_mov_b32 s{so}, 0"))
            else: r.append(Ins(f"s_add_u32 s{so}, s{sOB if p % 2 == 0 else sOA}, 16384"))
        r.append(Ins(f"s_add_u32 m0, s{sWL}, {sa + i*(PS-1024)}"))
        r.append(Ins(f"buffer_load_dwordx4 v{vg}, s[{srd}:{srd+3}], s{so} offen offset:{i*1024} nt lds", tag))
        return r
    r = []
    if i == 0: r.append(Ins(f"s_add_u32 s{sTMP}, s{sWOO}, {p*16*896}"))
    r.append(Ins(f"s_add_u32 m0, s{sWL}, {sa + i*(PS-896)}"))
    r.append(Ins(f"buffer_load_dwordx4 v{vGK}, s[{SWO}:{SWO+3}], s{sTMP} offen offset:{i*896} lds", tag))
    return r

WO0 = 94
def item_kind(idx):
    if idx >= WO0: return ('O', idx - WO0)
    j = idx - 28
    if j == 0: return ('K', 0)
    if j % 2 == 1:
        p = (j + 1) // 2
        return ('K', p) if p <= 31 else ('H', 0)
    p = (j - 2) // 2
    return ('V', p)
def iK(p): return 28 if p == 0 else 28 + 2 * p - 1
def iV(p): return 28 + 2 * p + 2
NITEMS = WO0 + 32

def xload(ks):
    for rh in range(2):
        P(f"buffer_load_dwordx4 {vr(XF(rh,ks),4)}, v{vXO+rh}, s[{SX}:{SX+3}], 0 offen offset:{ks*64}", ('x', ks))
def issue_item_linear(idx):
    for i in range(4):
        r = dma_piece(idx, i)
        for x in r[:-1]: pro.append(x)
        P("s_nop 0")
        pro.append(r[-1])
xload(0)
issue_item_linear(0); issue_item_linear(1)
xload(1)
issue_item_linear(2); issue_item_linear(3)
for ks in range(2, 14): xload(ks)
for it in range(4, 8): issue_item_linear(it)
P(f"s_lshl_b32 s{sTMP}, s{sB}, 3"); P(f"s_add_u32 s{sTMP}, s{sTMP}, s{sKVH}"); P(f"s_lshl_b32 s{sTMP}, s{sTMP}, 19")
for S in (SK, SV):
    P(f"s_add_u32 s{S}, s{S}, s{sTMP}"); P(f"s_addc_u32 s{S+1}, s{S+1}, 0")
    P(f"s_mov_b32 s{S+2}, 0x80000"); P(f"s_mov_b32 s{S+3}, 0x20000")
P(f"s_mov_b32 s{SWO+2}, {4096*896}"); P(f"s_mov_b32 s{SWO+3}, 0x20000")
P(f"s_mul_i32 s{sTMP}, s2, 114688")
P(f"s_add_u32 s{SWS}, s56, s{sTMP}"); P(f"s_addc_u32 s{SWS+1}, s57, 0")
P(f"s_mov_b32 s{SWS+2}, 114688"); P(f"s_mov_b32 s{SWS+3}, 0x20000")
P("v_lshrrev_b32 v5, 4, v0"); P("v_lshlrev_b32 v5, 7, v5")
P("v_bfe_u32 v6, v0, 3, 1"); P("v_lshl_add_u32 v5, v6, 9, v5")
P(f"s_lshl_b32 s{sTMP}, s{sW}, 12"); P(f"v_add_u32 v5, s{sTMP}, v5")
P("v_and_b32 v6, 7, v0"); P(f"v_lshl_add_u32 v{vGV}, v6, 4, v5")
P("v_and_b32 v6, 4, v0"); P("v_bfe_u32 v7, v0, 1, 1"); P("v_add_u32 v6, v6, v7")
P("v_and_b32 v7, 1, v0"); P("v_lshl_add_u32 v6, v7, 1, v6")
P(f"v_lshl_add_u32 v{vGK}, v6, 4, v5")
P("v_lshrrev_b32 v5, 2, v0"); P(f"v_mul_u32_u24 v5, {PS}, v5")
P("v_and_b32 v6, 3, v0"); P(f"v_lshl_add_u32 v{vW0}, v6, 3, v5")
P(f"v_add_u32 v{vW1}, {4*SLOT}, v{vW0}")
P("v_bfe_u32 v5, v0, 1, 3"); P(f"v_mul_u32_u24 v5, {PS}, v5")
P("v_and_b32 v6, 1, v0"); P("v_lshl_add_u32 v5, v6, 7, v5")
P("v_lshrrev_b32 v6, 4, v0"); P("v_lshl_add_u32 v5, v6, 4, v5")
P(f"v_mov_b32 v{vT}, v5")
P(f"v_add_u32 v{vK}, {4*SLOT}, v5")
P("v_lshrrev_b32 v5, 3, v0"); P(f"v_mul_u32_u24 v5, {PS}, v5")
P("v_bfe_u32 v6, v0, 2, 1"); P("v_lshl_add_u32 v5, v6, 7, v5")
P("v_and_b32 v6, 3, v0"); P(f"v_lshl_add_u32 v{vV}, v6, 3, v5")
for r in vL: P(f"v_mov_b32 v{r}, 0")
for i in range(4): P(f"v_mov_b32 v{NEGM+i}, 0")

M = []
pre = []
gap = []
cost = []
mark = {}
def addm(t):
    M.append(Ins(t)); pre.append([]); gap.append([]); cost.append(0)
    return len(M) - 1
def put(g, x):
    if isinstance(x, str): x = Ins(x)
    gap[g].append(x); cost[g] += x.cost
def putpre(g, x):
    if isinstance(x, str): x = Ins(x)
    pre[g].append(x)
    if g > 0: cost[g - 1] += x.cost
def stream(ins, g0, g1):
    ins = [Ins(x) if isinstance(x, str) else x for x in ins]
    tot = sum(x.cost for x in ins)
    lvl = (tot + sum(cost[g0:g1])) / (g1 - g0)
    for _ in range(20):
        free = sum(max(lvl - cost[g], 0) for g in range(g0, g1))
        if free <= tot + 1e-9: break
        lvl -= (free - tot) / (g1 - g0)
    budget = 0.0; idx = 0
    for g in range(g0, g1):
        budget += max(lvl - cost[g], 0)
        while idx < len(ins) and budget >= ins[idx].cost - 0.5:
            budget -= ins[idx].cost; put(g, ins[idx]); idx += 1
    while idx < len(ins):
        put(g1 - 1, ins[idx]); idx += 1

frags = []
def newfrag(reads_fn, items):
    f = len(frags)
    frags.append(dict(reads=[Ins(t, ('fr', f)) for t in reads_fn(fr(f))], first=len(M), items=items))
    return f

syncs = []

for ks in range(14):
    for hh in range(2):
        for t in range(16):
            off = hh * 512 + t * 32
            f = newfrag(lambda r: [f"ds_read_b64_tr_b16 {vr(r,2)}, v{vW0} offset:{slot_rel(2*ks)+off}",
                                   f"ds_read_b64_tr_b16 {vr(r+2,2)}, v{vW1} offset:{slot_rel(2*ks+1)+off}"], (2*ks, 2*ks+1))
            frags[f]['ph'] = 'Q'
            for rh in range(2):
                a = ACC(hh * 2 + rh, t)
                c = "0" if ks == 0 else ar(a, 4)
                addm(f"{MF} {ar(a,4)}, {vr(fr(f),4)}, {vr(XF(rh,ks),4)}, {c}")
QEND = len(M)

def qk(p, first):
    S = SB[p & 1]
    base = vT if p == 0 else vK
    for kt in range(2):
        for sg in range(2):
            fs = []
            for s4 in range(4):
                s = sg * 4 + s4
                off = slot_rel(iK(p)) + kt * 8 * PS + 256 * (s >> 1) + 64 * (s & 1)
                f = newfrag(lambda r: [f"ds_read_b128 {vr(r,4)}, v{base} offset:{off}"], (iK(p),))
                frags[f]['ph'] = 'K'
                fs.append(f)
            for ct in range(4):
                for s4 in range(4):
                    s = sg * 4 + s4
                    d = S + ct * 8 + kt * 4
                    if s == 0: c = "0" if first else vr(NEGM + ct * 4, 4)
                    else: c = vr(d, 4)
                    addm(f"{MF} {vr(d,4)}, {vr(fr(fs[s4]),4)}, {vr(QFr(ct,s),4)}, {c}")
def pv(p):
    S = SB[p & 1]
    for t in range(16):
        off = slot_rel(iV(p)) + 256 * (t >> 2) + 32 * (t & 3)
        f = newfrag(lambda r: [f"ds_read_b64_tr_b16 {vr(r,2)}, v{vV} offset:{off}",
                               f"ds_read_b64_tr_b16 {vr(r+2,2)}, v{vV} offset:{off+8*PS}"], (iV(p),))
        frags[f]['ph'] = 'V'
        for ct in range(4):
            a = ACC(ct, t)
            addm(f"{MF} {ar(a,4)}, {vr(fr(f),4)}, {vr(S+ct*8,4)}, {ar(a,4)}")

pstart = {}
pstart[-1] = len(M); qk(0, True)
for p in range(0, 33):
    pstart[p] = len(M)
    if p >= 1: pv(p - 1)
    if p <= 30: qk(p + 1, False)
pstart[33] = len(M)
AEND = len(M)
def OF(rh, ks): return QF + (ks * 2 + rh) * 4
def OACC(t, rh): return (rh * 28 + t) * 4
for ks in range(16):
    for t in range(28):
        f = newfrag(lambda r: [f"ds_read_b64_tr_b16 {vr(r,2)}, v{vW0} offset:{slot_rel(WO0+2*ks)+t*32}",
                               f"ds_read_b64_tr_b16 {vr(r+2,2)}, v{vW1} offset:{slot_rel(WO0+2*ks+1)+t*32}"], (WO0+2*ks, WO0+2*ks+1))
        frags[f]['ph'] = 'O'
        for rh in range(2):
            a = OACC(t, rh)
            c = "0" if ks == 0 else ar(a, 4)
            addm(f"{MF} {ar(a,4)}, {vr(fr(f),4)}, {vr(OF(rh,ks),4)}, {c}")
NM = len(M)
for f, d in enumerate(frags):
    regs = {f"v{fr(f)+i}" for i in range(4)}
    lastu = d['first']
    for g in range(d['first'], min(d['first'] + 20, NM)):
        if M[g].srcA == regs and (f + 8 >= len(frags) or g < frags[f + 8]['first']): lastu = g
    d['last'] = lastu

head = []
DQ = 6
rdgap = {}
nf = len(frags)
grp_first = {}
for f, d in enumerate(frags):
    earliest = frags[f - 8]['last'] if f >= 8 else -1
    if d['ph'] in 'QO':
        g = frags[f - DQ]['first'] if f >= DQ else -1
        g = max(g, earliest)
        gl = [g, g + 1] if g >= 0 else [-1, -1]
    else:
        g0 = f - (f % 4)
        gs = frags[g0 - 4]['first']
        e0 = max(frags[x - 8]['last'] for x in range(g0, g0 + 4))
        if d['ph'] == 'K':
            gl = [max(gs + (f % 4) * 2, earliest)]
        else:
            if frags[g0 - 4]['ph'] == 'V':
                gb = frags[f - 4]['first']
                gl = [gb, gb + 2]
            else:
                gl = [gs + (f % 4) * 3, gs + (f % 4) * 3 + 1]
            gl = [max(x, earliest) for x in gl]
    d['gl'] = gl
prev = -1
for f, d in enumerate(frags):
    for j in range(len(d['gl'])):
        d['gl'][j] = max(d['gl'][j], prev); prev = d['gl'][j]
for f, d in enumerate(frags):
    for x, g in zip(d['reads'], d['gl']):
        if g < 0: head.append(x)
        else: put(g, x)
    rdgap[f] = d['gl'][0]
for f, d in enumerate(frags):
    if d['ph'] == 'K':
        if f % 4 == 0: putpre(d['first'], Wait(ltags={('fr', f + i) for i in range(4)}))
    elif f % 2 == 0:
        putpre(d['first'], Wait(ltags={('fr', f), ('fr', f + 1)}))

def first_frag_at(g):
    for f, d in enumerate(frags):
        if d['first'] == g: return f
def sync_before_frag(f, publish, issue):
    g = rdgap[f]
    syncs.append((g, publish, issue))
for ks in range(0, 13):
    sync_before_frag(first_frag_at((ks + 1) * 64), 2 * ks + 3, 2 * ks + 7)
sync_before_frag(first_frag_at(pstart[-1]), 28, 33)
for p in range(-1, 32):
    sync_before_frag(first_frag_at(pstart[p + 1]), 28 + 2 * p + 3, 28 + 2 * p + 8 - (1 if p == 31 else 0))
sync_before_frag(first_frag_at(AEND), WO0 + 1, 91 + 8)
for ks in range(0, 15):
    sync_before_frag(first_frag_at(AEND + (ks + 1) * 56), WO0 + 2 * ks + 3, WO0 + 2 * ks + 7)
syncs.sort()
issued = 7
for k, (g, pub, iss) in enumerate(syncs):
    tags = {('it', i) for i in range(pub + 1)}
    if g < QEND: tags |= {('x', i) for i in range(14)} if g > 0 else {('x', 0)}
    putpre(g, Wait(vtags=tags))
    putpre(g, "s_barrier")
def period_of(g):
    for p in range(32, -2, -1):
        if g >= pstart[p]: return p
    return None
for k, (g, pub, iss) in enumerate(syncs):
    gn = syncs[k + 1][0] if k + 1 < len(syncs) else NM
    items = [i for i in range(issued + 1, min(iss, NITEMS - 1) + 1) if item_kind(i)[0] != 'H' or i < 28]
    items = [i for i in items if i < 28 or item_kind(i)[0] != 'H']
    items = [i for i in items if i not in (91, 93)]
    issued = max(issued, min(iss, NITEMS - 1))
    if not items: continue
    g0 = g + 1
    per = period_of(g) if g >= pstart[-1] and g < AEND else None
    if per is not None and per + 1 <= 32 and pstart[per + 1] < gn - 20: g0 = pstart[per + 1] + 1
    npieces = 4 * len(items)
    span = gn - 2 - g0
    for j in range(npieces):
        gg = g0 + (j * span) // npieces
        r = dma_piece(items[j // 4], j % 4)
        for x in r[:-1]: put(gg, x)
        put(gg + 1, r[-1])

gsw = pstart[29]
for x in [f"v_lshlrev_b32 v{vGK}, 4, v0", f"s_mul_i32 s{sTMP}, s{sW}, {4*896}", f"v_add_u32 v{vGK}, s{sTMP}, v{vGK}",
          f"v_add_u32 v{vT}, 8, v0", f"v_lshrrev_b32 v{vT}, 6, v{vT}", f"v_lshl_add_u32 v{vGK}, v{vT}, 30, v{vGK}"]:
    putpre(gsw, x)

conv = []
conv.append("s_nop 7")
TMP = SB[1]
def qconv(ct, s, tb):
    r = []
    for u in range(2):
        for i in range(4): r.append(f"v_accvgpr_read_b32 v{tb+u*4+i}, a{ACC(ct,2*s+u)+i}")
    for i in range(8): r.append(f"v_mul_f32 v{tb+i}, s{sC}, v{tb+i}")
    q = QFr(ct, s)
    for i in range(4): r.append(f"v_cvt_pk_bf16_f32 v{q+i}, v{tb+2*i}, v{tb+2*i+1}")
    return r, [f"v_permlane16_swap_b32 v{q}, v{q+2}", f"v_permlane16_swap_b32 v{q+1}, v{q+3}"]
pend = []
n = 0
for ct in range(4):
    for s in range(8):
        r, sw = qconv(ct, s, TMP + (n % 2) * 8)
        conv += r[:8] + pend + r[8:]
        pend = sw
        if s % 2 == 1:
            a = ACC(ct, 2 * s - 2)
            pend = pend + [f"v_mfma_f32_32x32x16_bf16 {ar(a,16)}, {vr(NEGM,4)}, {vr(NEGM,4)}, 0"]
        n += 1
conv += ["s_nop 1"] + pend + ["s_nop 1"]
for x in conv: put(QEND - 1, x)

rare = []
def rowmax_code(S, ct, dst, t2):
    b = S + ct * 8
    r = [f"v_max3_f32 v{dst}, v{b}, v{b+1}, v{b+2}", f"v_max3_f32 v{dst}, v{b+3}, v{b+4}, v{dst}",
         f"v_max3_f32 v{dst}, v{b+5}, v{b+6}, v{dst}", f"v_max_f32 v{dst}, v{b+7}, v{dst}",
         f"v_mov_b32 v{t2}, v{dst}", "s_nop 1", f"v_permlane32_swap_b32 v{dst}, v{t2}", f"v_max_f32 v{dst}, v{dst}, v{t2}",
         f"v_mov_b32 v{t2}, v{dst}", "s_nop 1", f"v_permlane16_swap_b32 v{dst}, v{t2}", f"v_max_f32 v{dst}, v{dst}, v{t2}"]
    return r
def exps(S):
    r = []
    for i in range(33):
        if i < 32: r.append(f"v_exp_f32 v{S+i}, v{S+i}")
        if i >= 1:
            j = i - 1
            r.append(f"v_add_f32 v{vL[j//8]}, v{vL[j//8]}, v{S+j}")
            if j % 2 == 1:
                r.append(f"v_cvt_pk_bf16_f32 v{S + (j//8)*8 + (j%8)//2}, v{S+j-1}, v{S+j}")
    return r
def lab(p):
    return f"L{(p-1)%4}" if 1 <= p <= 28 else f"S{p}"
done_rare = set()
for p in range(0, 32):
    S = SB[p & 1]
    g0, g1 = pstart[p], pstart[p + 1]
    if p == 0:
        init = ["s_nop 7"]
        for ct in range(4):
            init += rowmax_code(S, ct, vF[ct], vT)
            for i in range(8): init.append(f"v_sub_f32 v{S+ct*8+i}, v{S+ct*8+i}, v{vF[ct]}")
            for i in range(4): init.append(f"v_sub_f32 v{NEGM+ct*4+i}, 0, v{vF[ct]}")
        init.append("s_nop 1")
        for x in init: put(g0 - 1, x)
        stream(exps(S), g0, g1 - 2)
        continue
    order = [ct * 8 + i for ct in range(4) for i in range(4)] + [ct * 8 + 4 + i for ct in range(4) for i in range(4)]
    mx = [f"v_max_f32 v{vT}, v{S+order[0]}, v{S+order[1]}"]
    for i in range(2, 32, 2): mx.append(f"v_max3_f32 v{vT}, v{S+order[i]}, v{S+order[i+1]}, v{vT}")
    L = lab(p)
    mx += [f"v_cmp_lt_f32 vcc, s{sT}, v{vT}", f"s_cbranch_vccnz RA_{L}", f"RAr_{L}:"]
    put(g0 + 63, f"s_cbranch_vccnz RB_{L}")
    put(g0 + 63, f"RBr_{L}:")
    stream(mx + exps(S), g0 + 1, g1 - 2)
    if L not in done_rare:
        done_rare.add(L)
        rare.append(f"RA_{L}:")
        for ct in range(4):
            rare += rowmax_code(S, ct, vF[ct], vT)
            rare.append(f"v_max_f32 v{vF[ct]}, 0, v{vF[ct]}")
            for i in range(8): rare.append(f"v_sub_f32 v{S+ct*8+i}, v{S+ct*8+i}, v{vF[ct]}")
            for i in range(4): rare.append(f"v_sub_f32 v{NEGM+ct*4+i}, v{NEGM+ct*4+i}, v{vF[ct]}")
            rare.append(f"v_sub_f32 v{vF[ct]}, 0, v{vF[ct]}")
            rare.append(f"v_exp_f32 v{vF[ct]}, v{vF[ct]}")
            rare.append("s_nop 0")
            rare.append(f"v_mul_f32 v{vL[ct]}, v{vL[ct]}, v{vF[ct]}")
        rare.append(f"s_branch RAr_{L}")
        rare.append(f"RB_{L}:")
        rare.append(f"s_call_b64 s[{sRET}:{sRET+1}], RESCALE")
        rare.append(f"s_branch RBr_{L}")
rare.append("RESCALE:")
rare.append("s_nop 7")
for ct in range(4):
    for i in range(64):
        a = ct * 64 + i
        rare += [f"v_accvgpr_read_b32 v{vT}, a{a}", f"v_mul_f32 v{vT}, v{vT}, v{vF[ct]}", f"v_accvgpr_write_b32 a{a}, v{vT}"]
rare.append("s_nop 1")
rare.append(f"s_setpc_b64 s[{sRET}:{sRET+1}]")

oc = ["s_nop 7"]
for ct in range(4):
    l = vL[ct]
    oc += [f"v_mov_b32 v{vT}, v{l}", "s_nop 1", f"v_permlane32_swap_b32 v{l}, v{vT}", f"v_add_f32 v{l}, v{l}, v{vT}",
           f"v_mov_b32 v{vT}, v{l}", "s_nop 1", f"v_permlane16_swap_b32 v{l}, v{vT}", f"v_add_f32 v{l}, v{l}, v{vT}",
           f"v_rcp_f32 v{l}, v{l}"]
n = 0
for ks in range(16):
    hh, s = ks >> 3, ks & 7
    for rh in range(2):
        ct = hh * 2 + rh
        tb = SB[0] + (n % 2) * 8; n += 1
        for u in range(2):
            for i in range(4): oc.append(f"v_accvgpr_read_b32 v{tb+u*4+i}, a{ACC(ct,2*s+u)+i}")
        for i in range(8): oc.append(f"v_mul_f32 v{tb+i}, v{vL[ct]}, v{tb+i}")
        q = OF(rh, ks)
        for i in range(4): oc.append(f"v_cvt_pk_bf16_f32 v{q+i}, v{tb+2*i}, v{tb+2*i+1}")
oc.append("s_nop 1")
for x in oc: put(AEND - 1, x)

epi = []
def E(t, tag=None): epi.append(Ins(t, tag))
E("s_nop 7")
E(f"s_mul_i32 s{sTMP}, s{sW}, 28672")
E(f"v_lshlrev_b32 v1, 4, v0")
n = 0
for rh in range(2):
    for tp in range(14):
        tb = SB[0] + (n % 4) * 8
        for u in range(2):
            for i in range(4): E(f"v_accvgpr_read_b32 v{tb+u*4+i}, a{OACC(2*tp+u,rh)+i}")
        q = QF + (n % 8) * 4
        for i in range(4): E(f"v_cvt_pk_bf16_f32 v{q+i}, v{tb+2*i}, v{tb+2*i+1}")
        c = rh * 14 + tp
        if c % 4 == 0 and c: E(f"s_add_u32 s{sTMP}, s{sTMP}, 4096")
        E(f"buffer_store_dwordx4 {vr(q,4)}, v1, s[{SWS}:{SWS+3}], s{sTMP} offen offset:{(c%4)*1024}")
        n += 1

seq = list(pro)
seq.append(Wait(vtags={('it', 0), ('it', 1), ('x', 0)}))
seq.append(Ins("s_barrier"))
seq += head
pidx = {v: k for k, v in pstart.items()}
for g in range(NM):
    if g in pidx: seq.append(Ins(f"; period {pidx[g]}", ('P', pidx[g])))
    seq += pre[g]
    seq.append(M[g])
    seq += gap[g]
seq += epi
seq, probs = resolve_waits(seq)
probs += check_hazards(seq)
probs += check_hazards([Ins(x) for x in rare], 'rare')
def ring_check(seq):
    import re
    pr = []
    lq = []; vq = []
    landed = set(); published = set()
    reads_left = {}
    for f, d in enumerate(frags):
        for it in d['items']: reads_left[it] = reads_left.get(it, 0) + len(d['reads'])
    done_pieces = {}
    freed = set(i for i in range(NITEMS) if i not in reads_left)
    consumed = set(freed)
    for x in seq:
        if x.kind == 's_waitcnt':
            m = re.search(r'vmcnt\((\d+)\)', x.text)
            if m:
                c = int(m.group(1))
                while len(vq) > c:
                    t = vq.pop(0)
                    if t and t[0] == 'it':
                        done_pieces[t[1]] = done_pieces.get(t[1], 0) + 1
                        if done_pieces[t[1]] == 4: landed.add(t[1])
            m = re.search(r'lgkmcnt\((\d+)\)', x.text)
            if m:
                c = int(m.group(1))
                while len(lq) > c:
                    t = lq.pop(0)
                    if t and t[0] == 'fr':
                        for it in frags[t[1]]['items']:
                            reads_left[it] -= 1
                            if reads_left[it] == 0: consumed.add(it)
        elif x.kind == 's_barrier':
            published |= landed; freed |= consumed
        elif x.kind == 'ds':
            lq.append(x.tag)
            if x.tag and x.tag[0] == 'fr':
                for it in frags[x.tag[1]]['items']:
                    if it not in published: pr.append(f"ring: read of unpublished item {it}: {x.text}")
        elif x.kind == 'smem': lq.append(None)
        elif x.kind in ('vmem', 'dma', 'vstore'):
            vq.append(x.tag)
            if x.kind == 'dma':
                it = x.tag[1]
                for o in range(it - NSLOT, -1, -NSLOT):
                    if o not in freed: pr.append(f"ring: dma item {it} overwrites unfreed {o}")
    return pr
probs += ring_check(seq)
for x in probs[:40]: sys.stderr.write(x + "\n")
sys.stderr.write(f"{len(probs)} problems; NM={NM}; total instrs {len(seq)}\n")
pp = {x.tag[1]: i for i, x in enumerate(seq) if isinstance(x.tag, tuple) and x.tag[0] == 'P'}
def txt(a, b): return [x.text for x in seq[a:b] if not x.text.startswith('; period')]
body = txt(pp[1], pp[5])
for it in range(1, 7):
    other = txt(pp[1 + 4 * it], pp[5 + 4 * it])
    if other != body:
        for a, b in zip(body, other):
            if a != b: sys.stderr.write(f"loop mismatch it{it}: {a} | {b}\n"); break
        raise SystemExit("loop fold failed")
for p in (1, 2):
    c = cost[pstart[p]:pstart[p+1]]
    sys.stderr.write(f"period {p}: filler slots {sum(c)} max {max(c)} hist {[c.count(i) for i in range(6)]}\n")
c = cost[64:128]; sys.stderr.write(f"qproj kstep: {sum(c)} hist {[c.count(i) for i in range(6)]}\n")
lines = txt(0, pp[1])
lines.append(f"s_mov_b32 s{sLOOP}, 0")
lines.append(".p2align 6")
lines.append("L_loop:")
lines += body
lines += [f"s_add_u32 s{sLOOP}, s{sLOOP}, 1", f"s_cmp_lt_u32 s{sLOOP}, 7", "s_cbranch_scc1 L_loop"]
lines += txt(pp[29], len(seq))
lines.append("L_end:")
lines.append("s_endpgm")
lines += rare

hdr = open('cdna_kernels/' + NAME + '.s.ref').read().split('; Override launch')[0]
o = [hdr.rstrip()]
o.append(f"; @launch kernel=attn_kernel grid=(256,1,1) block=(256,1,1) lds={LDS_BYTES}")
o.append(f"; @launch kernel=reduce_kernel grid=(896,1,1) block=(256,1,1) lds=0")
o.append('.amdgcn_target "amdgcn-amd-amdhsa--gfx950"')
o.append(".text\n.globl attn_kernel\n.p2align 8\n.type attn_kernel,@function\nattn_kernel:")
for l in lines:
    o.append(l if (l.endswith(':') or l.startswith('.')) else "  " + l)

R = []
R.append("s_cmp_ge_u32 s2, 896")
R.append("s_cbranch_scc1 R_end")
R.append("s_load_dwordx2 s[4:5], s[0:1], 96")
R.append("s_load_dwordx2 s[8:9], s[0:1], 80")
R.append("v_lshrrev_b32 v1, 6, v0")
R.append("v_and_b32 v0, 63, v0")
R.append("v_readfirstlane_b32 s3, v1")
R.append("s_lshl_b32 s12, s2, 2")
R.append("s_add_u32 s12, s12, s3")
R.append("s_mul_i32 s13, s12, 9363")
R.append("s_lshr_b32 s13, s13, 20")
R.append("s_mul_i32 s14, s13, 112")
R.append("s_sub_u32 s14, s12, s14")
R.append("s_mul_i32 s15, s14, 2341")
R.append("s_lshr_b32 s15, s15, 16")
R.append("s_mul_i32 s16, s15, 28")
R.append("s_sub_u32 s16, s14, s16")
R.append("s_mul_i32 s17, s13, 917504")
R.append("s_lshl_b32 s18, s14, 10")
R.append("s_add_u32 s17, s17, s18")
R.append("v_lshlrev_b32 v2, 4, v0")
R.append("s_waitcnt lgkmcnt(0)")
R.append("s_mov_b32 s6, 29360128"); R.append("s_mov_b32 s7, 0x20000")
R.append("s_mov_b32 s10, 3670016"); R.append("s_mov_b32 s11, 0x20000")
for k in range(8):
    R.append(f"buffer_load_dwordx4 v[{8+4*k}:{11+4*k}], v2, s[4:7], s17 offen")
    if k < 7: R.append("s_add_u32 s17, s17, 114688")
R.append("s_cmp_ge_u32 s16, 14")
R.append("s_cselect_b32 s19, 1, 0")
R.append("s_mul_i32 s20, s19, 14")
R.append("s_sub_u32 s20, s16, s20")
R.append("s_and_b32 s21, s13, 15")
R.append("s_lshr_b32 s22, s13, 4")
R.append("s_lshl_b32 s21, s21, 7")
R.append("s_lshl_b32 s23, s15, 5")
R.append("s_add_u32 s21, s21, s23")
R.append("s_lshl_b32 s23, s19, 4")
R.append("s_add_u32 s21, s21, s23")
R.append("s_mul_i32 s21, s21, 1792")
R.append("s_mul_i32 s22, s22, 896")
R.append("s_add_u32 s21, s21, s22")
R.append("s_lshl_b32 s20, s20, 6")
R.append("s_add_u32 s21, s21, s20")
R.append("v_and_b32 v3, 15, v0")
R.append("v_mul_u32_u24 v3, 1792, v3")
R.append("v_lshrrev_b32 v4, 4, v0")
R.append("v_lshl_add_u32 v3, v4, 3, v3")
for k in range(8):
    R.append(f"s_waitcnt vmcnt({7-k})")
    for i in range(4):
        src = 8 + 4 * k + i
        if k == 0:
            R.append(f"v_lshlrev_b32 v{40+2*i}, 16, v{src}")
            R.append(f"v_and_b32 v{41+2*i}, 0xffff0000, v{src}")
        else:
            R.append(f"v_lshlrev_b32 v5, 16, v{src}")
            R.append(f"v_and_b32 v6, 0xffff0000, v{src}")
            R.append(f"v_add_f32 v{40+2*i}, v{40+2*i}, v5")
            R.append(f"v_add_f32 v{41+2*i}, v{41+2*i}, v6")
for i in range(4): R.append(f"v_cvt_pk_bf16_f32 v{48+i}, v{40+2*i}, v{41+2*i}")
R.append("buffer_store_dwordx2 v[48:49], v3, s[8:11], s21 offen")
R.append("buffer_store_dwordx2 v[50:51], v3, s[8:11], s21 offen offset:32")
R.append("R_end:")
R.append("s_endpgm")
pr = check_hazards([Ins(x) for x in R], 'reduce')
for x in pr: sys.stderr.write(x + "\n")
o.append(".globl reduce_kernel\n.p2align 8\n.type reduce_kernel,@function\nreduce_kernel:")
for l in R: o.append(l if l.endswith(':') else "  " + l)
o.append('''.section .rodata,"a"
.p2align 6
.amdhsa_kernel attn_kernel
  .amdhsa_next_free_vgpr 512
  .amdhsa_next_free_sgpr 96
  .amdhsa_accum_offset 256
  .amdhsa_group_segment_fixed_size 0
  .amdhsa_kernarg_size 104
  .amdhsa_user_sgpr_count 2
  .amdhsa_user_sgpr_kernarg_segment_ptr 1
  .amdhsa_system_sgpr_workgroup_id_x 1
.end_amdhsa_kernel
.p2align 6
.amdhsa_kernel reduce_kernel
  .amdhsa_next_free_vgpr 56
  .amdhsa_next_free_sgpr 32
  .amdhsa_accum_offset 56
  .amdhsa_group_segment_fixed_size 0
  .amdhsa_kernarg_size 104
  .amdhsa_user_sgpr_count 2
  .amdhsa_user_sgpr_kernarg_segment_ptr 1
  .amdhsa_system_sgpr_workgroup_id_x 1
.end_amdhsa_kernel
''')
open(OUT, 'w').write("\n".join(o))
```
